```python
import torch

def _softmax(x, axis=-1):
    return torch.softmax(x, dim=axis)
def _gelu(x):
    return torch.nn.functional.gelu(x, approximate="tanh")
def _silu(x):
    return torch.nn.functional.silu(x)
def _sigmoid(x):
    return torch.sigmoid(x)
def _layernorm(x, axis=-1, eps=1e-5):
    m = x.mean(dim=axis, keepdim=True)
    v = x.var(dim=axis, keepdim=True, unbiased=False)
    return (x - m) / torch.sqrt(v + eps)
def _scatter_add(tgt, idx, src, axis=0):
    return tgt.clone().index_add_(axis, idx, src)
def _segment_sum(src, seg, n):
    out = torch.zeros((n,) + src.shape[1:], dtype=src.dtype)
    return out.index_add_(0, seg, src)
def _pad(x, pw):
    flat = tuple(v for pair in reversed(pw) for v in pair)
    return torch.nn.functional.pad(x, flat)

kernel_name = 'concat_heads__sliding_block_cached__sliding_block_cached__decode'

def setup_inputs():

    _w = (lambda a: (lambda t: t.to(torch.bfloat16) if t.is_floating_point() else t)(torch.as_tensor(a)))
    def _A_setup():
        B, Sq, D = 2, 1, 576
        Hq, Hkv, Sk, Dh = 32, 16, 16384, 128
        assert Hq % Hkv == 0, (Hq, Hkv)
        return {
            "x": _w((lambda *s: torch.randn(*s, dtype=torch.bfloat16) * 0.8)(B, Sq, D)),
            "k_cache": _w((lambda *s: torch.randn(*s, dtype=torch.bfloat16) * 0.8)(B, Hkv, Sk, Dh)),
            "v_cache": _w((lambda *s: torch.randn(*s, dtype=torch.bfloat16) * 0.05)(B, Hkv, Sk, Dh)),
            "wq": _w((lambda *s: torch.randn(*s, dtype=torch.bfloat16) * 0.8)(D, Hq * Dh) * (D ** -0.5)),
            "wo": _w((lambda *s: torch.randn(*s, dtype=torch.bfloat16) * 0.05)(Hq * Dh, D) * ((Hq * Dh) ** -0.5)),
        }
    _A_in = _A_setup()

    def _B_setup():
        B, Sq, D = 2, 1, 576
        Hq, Hkv, Sk, Dh = 32, 16, 16384, 128
        assert Hq % Hkv == 0, (Hq, Hkv)
        return {
            "x": _w((lambda *s: torch.randn(*s, dtype=torch.bfloat16) * 0.8)(B, Sq, D)),
            "k_cache": _w((lambda *s: torch.randn(*s, dtype=torch.bfloat16) * 0.8)(B, Hkv, Sk, Dh)),
            "v_cache": _w((lambda *s: torch.randn(*s, dtype=torch.bfloat16) * 0.05)(B, Hkv, Sk, Dh)),
            "wq": _w((lambda *s: torch.randn(*s, dtype=torch.bfloat16) * 0.8)(D, Hq * Dh) * (D ** -0.5)),
            "wo": _w((lambda *s: torch.randn(*s, dtype=torch.bfloat16) * 0.05)(Hq * Dh, D) * ((Hq * Dh) ** -0.5)),
        }
    _B_in = _B_setup()

    return {
        "A_x": _A_in["x"],
        "A_k_cache": _A_in["k_cache"],
        "A_v_cache": _A_in["v_cache"],
        "A_wq": _A_in["wq"],
        "A_wo": _A_in["wo"],
        "B_x": _B_in["x"],
        "B_k_cache": _B_in["k_cache"],
        "B_v_cache": _B_in["v_cache"],
        "B_wq": _B_in["wq"],
        "B_wo": _B_in["wo"],
    }

def reference(A_x, A_k_cache, A_v_cache, A_wq, A_wo, B_x, B_k_cache, B_v_cache, B_wq, B_wo):
    def _A_ref(x, k_cache, v_cache, wq, wo):
        B, Sq, D = x.shape
        Hq, Dh = 32, 128
        Hkv, Sk = k_cache.shape[1], k_cache.shape[2]
        W = min(4096, max(256, Sk // 4))
        rep = Hq // Hkv
        q = (lambda x, *d: x.permute(*d))((x @ wq).reshape(B, Sq, Hq, Dh), 0, 2, 1, 3)
        k = (lambda x, n, axis: torch.repeat_interleave(x, n, dim=axis))(k_cache[:, :, Sk - W:, :], rep, axis=1)
        v = (lambda x, n, axis: torch.repeat_interleave(x, n, dim=axis))(v_cache[:, :, Sk - W:, :], rep, axis=1)
        scores = torch.einsum("bhqd,bhkd->bhqk", q, k) * (Dh ** -0.5)
        p = _softmax(scores, axis=-1)
        o = torch.einsum("bhqk,bhkd->bhqd", p, v)
        return (lambda x, *d: x.permute(*d))(o, 0, 2, 1, 3).reshape(B, Sq, Hq * Dh) @ wo

    def _B_ref(x, k_cache, v_cache, wq, wo):
        B, Sq, D = x.shape
        Hq, Dh = 32, 128
        Hkv, Sk = k_cache.shape[1], k_cache.shape[2]
        W = min(4096, max(256, Sk // 4))
        rep = Hq // Hkv
        q = (lambda x, *d: x.permute(*d))((x @ wq).reshape(B, Sq, Hq, Dh), 0, 2, 1, 3)
        k = (lambda x, n, axis: torch.repeat_interleave(x, n, dim=axis))(k_cache[:, :, Sk - W:, :], rep, axis=1)
        v = (lambda x, n, axis: torch.repeat_interleave(x, n, dim=axis))(v_cache[:, :, Sk - W:, :], rep, axis=1)
        scores = torch.einsum("bhqd,bhkd->bhqk", q, k) * (Dh ** -0.5)
        p = _softmax(scores, axis=-1)
        o = torch.einsum("bhqk,bhkd->bhqd", p, v)
        return (lambda x, *d: x.permute(*d))(o, 0, 2, 1, 3).reshape(B, Sq, Hq * Dh) @ wo

    a = _A_ref(A_x, A_k_cache, A_v_cache, A_wq, A_wo)
    b = _B_ref(B_x, B_k_cache, B_v_cache, B_wq, B_wo)
    return torch.concatenate([a, b], axis=-1)
```

```python
import sys
NAME="concat_heads__sliding_block_cached__sliding_block_cached__decode"
HDR=open("cdna_kernels/%s.s.ref"%NAME).read().split("; Override launch")[0]

def gen(opt):
    NT = " nt" if opt.get("nt",1) else ""
    L=[]
    def e(s): L.append("    "+s)
    def lab(s): L.append(s+":")
    QP,QB,OP,ML,YP=0,16384,20480,28672,32768
    LDS=YP+36864
    vK,vV,vWq,vWo,vT=1,2,3,4,5
    M0=6; vO=10; A0=14; A1=18; T=22; Q=30; S=46; vM=78; vL=79
    free=[80+4*i for i in range(44)]
    sK,sV,sWq,sWo,sX,sWs=36,40,44,48,52,56
    sW=60; sSlot=61; sKo=62; sVo=63; sQo=64; s2304=65; sC=66; sL2=67; sH=68
    lab("attn_kernel")
    e("s_cmp_ge_u32 s2, 256"); e("s_cbranch_scc1 L_end")
    e("s_load_dwordx16 s[8:23], s[0:1], 0")
    e("s_load_dwordx4 s[24:27], s[0:1], 64")
    e("s_load_dwordx2 s[28:29], s[0:1], 96")
    e("v_lshrrev_b32 v22, 6, v0")
    e("v_and_b32 v23, 63, v0")
    e("v_readfirstlane_b32 s%d, v22"%sW)
    e("s_and_b32 s3, s2, 7"); e("s_lshr_b32 s4, s2, 3")
    e("s_lshl_b32 s3, s3, 2"); e("s_and_b32 s5, s4, 3"); e("s_or_b32 s3, s3, s5")
    e("s_lshr_b32 s4, s4, 2")
    e("s_lshr_b32 s5, s3, 4")
    e("s_and_b32 s3, s3, 15")
    e("s_lshr_b32 s6, s4, 2")
    e("s_and_b32 s7, s4, 3")
    e("v_lshrrev_b32 v24, 4, v23")
    e("v_and_b32 v25, 15, v23")
    e("v_and_b32 v26, 3, v25"); e("v_lshlrev_b32 v26, 10, v26")
    e("v_lshrrev_b32 v27, 2, v25"); e("v_lshlrev_b32 v27, 8, v27")
    e("v_lshlrev_b32 v28, 4, v24")
    e("v_add3_u32 v%d, v26, v27, v28"%vK)
    e("v_lshlrev_b32 v%d, 4, v23"%vV)
    e("v_lshrrev_b32 v26, 3, v23")
    e("v_and_b32 v27, 7, v23")
    e("v_lshlrev_b32 v28, 4, v27")
    e("v_mul_u32_u24 v29, 72, v22"); e("v_add_u32 v29, v29, v26")
    e("v_lshlrev_b32 v%d, 1, v29"%vT)
    e("v_lshl_add_u32 v%d, v29, 13, v28"%vWq)
    e("v_lshlrev_b32 v29, 3, v22"); e("v_add_u32 v29, v29, v26")
    e("v_mul_u32_u24 v29, 4608, v29"); e("v_add_u32 v%d, v29, v28"%vWo)
    e("s_lshl_b32 s30, s5, 1"); e("s_or_b32 s30, s30, s6"); e("s_lshl_b32 s30, s30, 4"); e("s_or_b32 s30, s30, s3")
    e("s_lshl_b32 s30, s30, 2"); e("s_or_b32 s%d, s30, s7"%sSlot)
    e("s_lshl_b32 s30, s6, 4"); e("s_or_b32 s30, s30, s3"); e("s_lshl_b32 s30, s30, 22")
    e("s_lshl_b32 s31, s7, 18"); e("s_add_u32 s30, s30, s31"); e("s_add_u32 s30, s30, 0x300000")
    e("s_lshl_b32 s31, s3, 9")
    e("s_mul_i32 s32, s3, 294912")
    e("s_mul_i32 s33, s6, 1152")
    e("s_lshl_b32 s%d, s%d, 15"%(sKo,sW)); e("s_mov_b32 s%d, s%d"%(sVo,sKo))
    e("s_mov_b32 s%d, 0"%sQo); e("s_movk_i32 s%d, 2304"%s2304)
    e("s_cmp_eq_u32 s5, 0")
    e("s_waitcnt lgkmcnt(0)")
    def srd(d,a,b,off,size):
        e("s_cselect_b64 s[%d:%d], s[%d:%d], s[%d:%d]"%(d,d+1,a,a+1,b,b+1))
    srd(sX,8,18,0,0); srd(sK,10,20,0,0); srd(sV,12,22,0,0); srd(sWq,14,24,0,0); srd(sWo,16,26,0,0)
    def fin(d,off,size):
        e("s_add_u32 s%d, s%d, s%d"%(d,d,off)); e("s_addc_u32 s%d, s%d, 0"%(d+1,d+1))
        e("s_mov_b32 s%d, %s"%(d+2,size)); e("s_mov_b32 s%d, 0x00020000"%(d+3))
    fin(sX,33,"1152"); fin(sWq,31,"%d"%(576*8192-15*512)); fin(sK,30,"0x40000"); fin(sV,30,"0x40000"); fin(sWo,32,"294912")
    loads=[]
    for u in range(9):
        for cb in range(4): loads.append(("wq",u,cb))
    Kl=[("k",t,m) for t in range(8) for m in range(4)]
    Vl=[("v",t,r) for t in range(8) for r in range(4)]
    Wl=[("wo",u,cb) for u in range(4) for cb in range(9)]
    order=opt.get("order","fifo")
    if order=="fifo": loads+=Kl+Vl+Wl
    elif order=="mix":
        loads+=Kl
        nv0=opt.get("nv0",8); per=opt.get("per",2)
        loads+=Vl[:nv0]; vi=nv0; wi=0
        while wi<36:
            loads+=Wl[wi:wi+per]; wi+=per
            if vi<32: loads.append(Vl[vi]); vi+=1
        loads+=Vl[vi:]
    st={"n":0,"next":0}
    pos={}; reg={}
    cur={"k":0,"v":0,"wq":0}
    def vm(key=None):
        if key is not None: pos[key]=st["n"]
        st["n"]+=1
    done={"n":0}
    def issue():
        while st["next"]<len(loads) and free and st["n"]-done["n"]<62:
            k=loads[st["next"]]; st["next"]+=1
            r=free.pop(0); reg[k]=r
            d="v[%d:%d]"%(r,r+3)
            if k[0]=="wq":
                while cur["wq"]<k[1]: e("s_add_u32 s%d, s%d, 0x10000"%(sQo,sQo)); cur["wq"]+=1
                e("buffer_load_dwordx4 %s, v%d, s[%d:%d], s%d offen offset:%d"%(d,vWq,sWq,sWq+3,sQo,k[2]*128))
            elif k[0]=="k":
                while cur["k"]<k[1]: e("s_add_u32 s%d, s%d, 0x1000"%(sKo,sKo)); cur["k"]+=1
                e("buffer_load_dwordx4 %s, v%d, s[%d:%d], s%d offen offset:%d%s"%(d,vK,sK,sK+3,sKo,k[2]*64,NT))
            elif k[0]=="v":
                while cur["v"]<k[1]: e("s_add_u32 s%d, s%d, 0x1000"%(sVo,sVo)); cur["v"]+=1
                e("buffer_load_dwordx4 %s, v%d, s[%d:%d], s%d offen offset:%d%s"%(d,vV,sV,sV+3,sVo,k[2]*1024,NT))
            else:
                so="s%d"%s2304 if k[1]>=2 else "0"
                e("buffer_load_dwordx4 %s, v%d, s[%d:%d], %s offen offset:%d"%(d,vWo,sWo,sWo+3,so,(k[1]&1)*1152+k[2]*128))
            vm(k)
    def wait(keys):
        p=max(pos[k] for k in keys)
        if p+1>done["n"]:
            e("s_waitcnt vmcnt(%d)"%(st["n"]-p-1)); done["n"]=p+1
    X=S; QA=S+10
    for u in range(9):
        e("buffer_load_ushort v%d, v%d, s[%d:%d], 0 offen offset:%d"%(X+u,vT,sX,sX+3,16*u)); vm(("x",u))
    issue()
    e("s_mov_b32 s%d, s28"%sWs); e("s_mov_b32 s%d, s29"%(sWs+1)); e("s_mov_b32 s%d, 0x121000"%(sWs+2)); e("s_mov_b32 s%d, 0x00020000"%(sWs+3))
    e("s_mov_b32 s%d, 0x3db504f3"%sC); e("s_mov_b32 s%d, 0x3fb8aa3b"%sL2)
    e("v_and_b32 v28, 1, v27"); e("v_lshlrev_b32 v28, 4, v28"); e("v_mov_b32 v29, 0xffff"); e("v_lshlrev_b32 v28, v28, v29")
    e("v_lshrrev_b32 v29, 1, v27")
    for r in range(4):
        e("v_cmp_eq_u32 vcc, %d, v29"%r); e("s_nop 1"); e("v_cndmask_b32 v%d, 0, v28, vcc"%(M0+r))
    e("v_and_b32 v28, 1, v24"); e("v_lshlrev_b32 v28, 4, v28"); e("v_lshl_add_u32 v28, v27, 5, v28")
    e("v_and_b32 v29, 1, v26"); e("v_lshl_add_u32 v29, v22, 1, v29")
    def mkA(a,src):
        for r in range(4): e("v_and_b32 v%d, v%d, v%d"%(a+r,src,M0+r))
    def mfma(d,a,b,c):
        e("v_mfma_f32_16x16x32_bf16 v[%d:%d], v[%d:%d], v[%d:%d], %s"%(d,d+3,a,a+3,b,b+3,"0" if c is None else "v[%d:%d]"%(c,c+3)))
    wait([("x",8)])
    for u in range(9): e("v_lshl_or_b32 v%d, v%d, 16, v%d"%(X+u,X+u,X+u))
    for u in range(9):
        a=A0 if u%2==0 else A1
        mkA(a,X+u)
        wait([("wq",u,cb) for cb in range(4)]); e("s_nop 1")
        for cb in range(4):
            mfma(QA+4*cb,a,reg[("wq",u,cb)],None if u==0 else QA+4*cb)
        for cb in range(4): free.append(reg[("wq",u,cb)])
        issue()
    e("v_lshl_add_u32 v%d, v29, 10, v28"%vT)
    e("s_mov_b32 exec_lo, 0x00ff00ff"); e("s_mov_b32 exec_hi, 0xff00ff00"); e("s_nop 4")
    for cb in range(4): e("ds_write_b128 v%d, v[%d:%d] offset:%d"%(vT,QA+4*cb,QA+4*cb+3,QP+cb*256))
    e("s_mov_b64 exec, -1")
    e("s_waitcnt lgkmcnt(0)"); e("s_barrier")
    e("s_cmp_ge_u32 s%d, 4"%sW); e("s_cbranch_scc1 L_q2")
    e("v_lshlrev_b32 v%d, 2, v0"%vT)
    for p in range(8): e("ds_read2st64_b32 v[%d:%d], v%d offset0:%d offset1:%d"%(S+2*p,S+2*p+1,vT,8*p,8*p+4))
    e("v_lshlrev_b32 v%d, 1, v0"%vT)
    e("s_waitcnt lgkmcnt(0)")
    for st_ in (8,4,2,1):
        for i in range(st_): e("v_add_f32 v%d, v%d, v%d"%(S+i,S+i,S+i+st_))
    e("v_cvt_pk_bf16_f32 v%d, v%d, v%d"%(S,S,S))
    e("ds_write_b16 v%d, v%d offset:%d"%(vT,S,QB))
    e("s_waitcnt lgkmcnt(0)")
    lab("L_q2")
    e("s_barrier")
    e("v_and_b32 v%d, 1, v26"%vT); e("v_lshlrev_b32 v%d, 8, v%d"%(vT,vT)); e("v_lshl_add_u32 v%d, v24, 4, v%d"%(vT,vT))
    for m in range(4): e("ds_read_b128 v[%d:%d], v%d offset:%d"%(Q+4*m,Q+4*m+3,vT,QB+64*m))
    e("s_waitcnt lgkmcnt(0)")
    for t in range(8):
        wait([("k",t,m) for m in range(4)])
        for m in range(4): mfma(S+4*t,reg[("k",t,m)],Q+4*m,None if m==0 else S+4*t)
        for m in range(4): free.append(reg[("k",t,m)])
        if t==7 and opt.get("qfree",0):
            for m in range(4): free.append(Q+4*m)
        issue()
    e("s_nop 7")
    for i in range(0,32,2):
        a,b=S+i,S+i+1
        e("v_cvt_pk_bf16_f32 v%d, v%d, v%d"%(b,a,b))
        e("v_lshlrev_b32 v%d, 16, v%d"%(a,b)); e("v_and_b32 v%d, 0xffff0000, v%d"%(b,b))
        e("v_mul_f32 v%d, s%d, v%d"%(a,sC,a)); e("v_mul_f32 v%d, s%d, v%d"%(b,sC,b))
        e("v_cvt_pk_bf16_f32 v%d, v%d, v%d"%(b,a,b))
        e("v_lshlrev_b32 v%d, 16, v%d"%(a,b)); e("v_and_b32 v%d, 0xffff0000, v%d"%(b,b))
    e("v_max_f32 v%d, v%d, v%d"%(vM,S,S+1))
    for i in range(2,32,2): e("v_max3_f32 v%d, v%d, v%d, v%d"%(vM,vM,S+i,S+i+1))
    def xred(v,op):
        for sw in ("v_permlane32_swap_b32","v_permlane16_swap_b32"):
            e("v_mov_b32 v%d, v%d"%(vT,v)); e("s_nop 1"); e("%s v%d, v%d"%(sw,v,vT)); e("s_nop 1"); e("%s v%d, v%d, v%d"%(op,v,v,vT))
    xred(vM,"v_max_f32")
    e("v_mul_f32 v%d, s%d, v%d"%(vM,sL2,vM))
    for i in range(32): e("v_fma_f32 v%d, v%d, s%d, -v%d"%(S+i,S+i,sL2,vM))
    for i in range(32): e("v_exp_f32 v%d, v%d"%(S+i,S+i))
    e("v_add_f32 v%d, v%d, v%d"%(vL,S,S+1))
    for i in range(2,32): e("v_add_f32 v%d, v%d, v%d"%(vL,vL,S+i))
    for i in range(32): e("v_cvt_pk_bf16_f32 v%d, v%d, v%d"%(S+i,S+i,S+i))
    xred(vL,"v_add_f32")
    for t in range(8):
        for r in range(4):
            a=A0 if r%2==0 else A1
            mkA(a,S+4*t+r)
            wait([("v",t,r)]); e("s_nop 1")
            mfma(vO,a,reg[("v",t,r)],None if (t==0 and r==0) else vO)
            free.append(reg[("v",t,r)])
            issue()
    e("v_and_b32 v%d, 1, v26"%A0); e("v_lshlrev_b32 v%d, 5, v%d"%(A0,A0)); e("v_lshl_add_u32 v%d, v22, 2, v%d"%(A0,A0))
    e("v_lshrrev_b32 v%d, 1, v24"%A1); e("v_lshlrev_b32 v%d, 9, v%d"%(A1,A1)); e("v_lshl_add_u32 v%d, v22, 10, v%d"%(A1,A1))
    e("v_lshl_add_u32 v%d, v25, 5, v%d"%(A1,A1)); e("v_and_b32 v%d, 1, v24"%(A1+1)); e("v_lshl_add_u32 v%d, v%d, 4, v%d"%(A1,A1+1,A1))
    e("ds_write_b32 v%d, v%d offset:%d"%(A0,vM,ML)); e("ds_write_b32 v%d, v%d offset:%d"%(A0,vL,ML+64))
    e("ds_write_b128 v%d, v[%d:%d] offset:%d"%(A1,vO,vO+3,OP))
    e("s_lshr_b32 s%d, s%d, 2"%(sH,sW))
    e("v_lshrrev_b32 v%d, 2, v22"%A0); e("v_lshlrev_b32 v%d, 5, v%d"%(A0,A0))
    e("v_lshlrev_b32 v%d, 7, v22"%A1); e("v_lshl_add_u32 v%d, v26, 4, v%d"%(A1,A1))
    e("s_waitcnt lgkmcnt(0)"); e("s_barrier")
    if opt.get("qfree",0):
        for m in range(4): free.remove(Q+4*m)
    Mr=Q; Lr=Q+8
    e("ds_read_b128 v[%d:%d], v%d offset:%d"%(Mr,Mr+3,A0,ML)); e("ds_read_b128 v[%d:%d], v%d offset:%d"%(Mr+4,Mr+7,A0,ML+16))
    e("ds_read_b128 v[%d:%d], v%d offset:%d"%(Lr,Lr+3,A0,ML+64)); e("ds_read_b128 v[%d:%d], v%d offset:%d"%(Lr+4,Lr+7,A0,ML+80))
    for w in range(8): e("ds_read_b128 v[%d:%d], v%d offset:%d"%(S+4*w,S+4*w+3,A1,OP+1024*w))
    e("s_waitcnt lgkmcnt(10)")
    e("v_max3_f32 v%d, v%d, v%d, v%d"%(vM,Mr,Mr+1,Mr+2)); e("v_max3_f32 v%d, v%d, v%d, v%d"%(vM,vM,Mr+3,Mr+4))
    e("v_max3_f32 v%d, v%d, v%d, v%d"%(vM,vM,Mr+5,Mr+6)); e("v_max_f32 v%d, v%d, v%d"%(vM,vM,Mr+7))
    for w in range(8): e("v_sub_f32 v%d, v%d, v%d"%(Mr+w,Mr+w,vM))
    for w in range(8): e("v_exp_f32 v%d, v%d"%(Mr+w,Mr+w))
    e("s_waitcnt lgkmcnt(8)")
    e("v_mul_f32 v%d, v%d, v%d"%(vL,Mr,Lr))
    for w in range(1,8): e("v_fmac_f32 v%d, v%d, v%d"%(vL,Mr+w,Lr+w))
    e("v_rcp_f32 v%d, v%d"%(vT,vL))
    e("s_waitcnt lgkmcnt(0)")
    for u in range(4): e("v_mul_f32 v%d, v%d, v%d"%(S+u,S+u,Mr))
    for w in range(1,8):
        for u in range(4): e("v_fmac_f32 v%d, v%d, v%d"%(S+u,S+4*w+u,Mr+w))
    for u in range(4): e("v_mul_f32 v%d, v%d, v%d"%(S+u,S+u,vT))
    for u in range(4): e("v_cvt_pk_bf16_f32 v%d, v%d, v%d"%(S+u,S+u,S+u))
    acc=[vO]+[free.pop(0) for _ in range(8)]
    for u in range(4):
        a=A0 if u%2==0 else A1
        mkA(a,S+u)
        wait([("wo",u,cb) for cb in range(9)]); e("s_nop 1")
        for cb in range(9): mfma(acc[cb],a,reg[("wo",u,cb)],None if u==0 else acc[cb])
    e("s_and_b32 s30, s%d, 3"%sW); e("s_cmp_lg_u32 s30, 0"); e("s_cbranch_scc1 L_noml")
    e("s_lshl_b32 s30, s%d, 1"%sSlot); e("s_add_u32 s30, s30, s%d"%sH); e("s_lshl_b32 s30, s30, 3"); e("s_add_u32 s30, s30, 0x120000")
    e("v_mov_b32 v%d, 0"%vT)
    e("s_mov_b64 exec, 1")
    e("buffer_store_dwordx2 v[%d:%d], v%d, s[%d:%d], s30 offen"%(vM,vL,vT,sWs,sWs+3))
    e("s_mov_b64 exec, -1")
    lab("L_noml")
    e("v_mul_u32_u24 v%d, 2304, v29"%A0); e("v_add_u32 v%d, v%d, v28"%(A0,A0))
    e("s_mov_b32 exec_lo, 0x00ff00ff"); e("s_mov_b32 exec_hi, 0xff00ff00"); e("s_nop 4")
    for cb in range(9): e("ds_write_b128 v%d, v[%d:%d] offset:%d"%(A0,acc[cb],acc[cb]+3,YP+cb*256))
    e("s_mov_b64 exec, -1")
    e("v_lshlrev_b32 v%d, 4, v0"%vT)
    e("v_mov_b32 v%d, 16128"%(A1+1))
    e("v_cmp_lt_u32 vcc, 143, v0"); e("s_nop 1"); e("v_cndmask_b32 v%d, 0, v%d, vcc"%(A1,A1+1)); e("v_add_u32 v%d, v%d, v%d"%(A1,A1,vT))
    e("s_mul_i32 s30, s%d, 4608"%sSlot)
    e("s_waitcnt lgkmcnt(0)"); e("s_barrier")
    e("s_cmp_ge_u32 s%d, 5"%sW); e("s_cbranch_scc1 L_end")
    e("v_cmp_gt_u32 vcc, 288, v0"); e("s_and_saveexec_b64 s[32:33], vcc")
    for p in range(8): e("ds_read_b128 v[%d:%d], v%d offset:%d"%(S+4*p,S+4*p+3,A1,YP+p*2304))
    e("s_waitcnt lgkmcnt(0)")
    for st_ in (16,8,4):
        for i in range(st_): e("v_add_f32 v%d, v%d, v%d"%(S+i,S+i,S+i+st_))
    e("buffer_store_dwordx4 v[%d:%d], v%d, s[%d:%d], s30 offen"%(S,S+3,vT,sWs,sWs+3))
    lab("L_end")
    e("s_endpgm")
    k1="\n".join(L); L.clear()
    lab("fin_kernel")
    e("s_cmp_ge_u32 s2, 144"); e("s_cbranch_scc1 L_fend")
    e("s_load_dwordx2 s[4:5], s[0:1], 96"); e("s_load_dwordx2 s[8:9], s[0:1], 80")
    e("s_mul_i32 s12, s2, 1821"); e("s_lshr_b32 s12, s12, 16")
    e("s_mul_i32 s13, s12, 36"); e("s_sub_u32 s13, s2, s13")
    e("v_lshrrev_b32 v1, 2, v0"); e("v_and_b32 v2, 3, v0")
    e("s_lshl_b32 s14, s12, 4"); e("v_add_u32 v1, s14, v1")
    e("v_lshlrev_b32 v3, 6, v1")
    e("v_mul_u32_u24 v4, 18432, v1"); e("v_lshl_add_u32 v4, v2, 4, v4")
    e("s_lshl_b32 s14, s13, 6"); e("v_add_u32 v4, s14, v4")
    e("s_mov_b32 s6, 0x121000"); e("s_mov_b32 s7, 0x00020000"); e("s_movk_i32 s10, 4608"); e("s_mov_b32 s11, 0x00020000")
    e("s_mov_b32 s15, 0x120000"); e("s_movk_i32 s16, 4608"); e("s_movk_i32 s17, 9216"); e("s_movk_i32 s18, 13824")
    e("s_waitcnt lgkmcnt(0)")
    for i in range(4): e("buffer_load_dwordx4 v[%d:%d], v3, s[4:7], s15 offen offset:%d"%(8+4*i,11+4*i,16*i))
    for i in range(8): e("buffer_load_dwordx4 v[%d:%d], v4, s[4:7], %s offen offset:%d"%(24+4*i,27+4*i,["0","s16","s17","s18"][i//2],(i&1)*2304))
    e("s_and_b32 s19, s12, 1"); e("s_mul_i32 s19, s19, 2304"); e("s_lshr_b32 s20, s12, 1"); e("s_mul_i32 s20, s20, 1152")
    e("s_add_u32 s19, s19, s20"); e("s_lshl_b32 s20, s13, 5"); e("s_add_u32 s19, s19, s20")
    e("v_lshlrev_b32 v5, 3, v2")
    e("s_waitcnt vmcnt(8)")
    for h in range(2):
        m=[8+4*s+2*h for s in range(4)]
        e("v_max3_f32 v6, v%d, v%d, v%d"%(m[0],m[1],m[2])); e("v_max_f32 v6, v6, v%d"%m[3])
        for s in range(4): e("v_sub_f32 v%d, v%d, v6"%(m[s],m[s]))
        for s in range(4): e("v_exp_f32 v%d, v%d"%(m[s],m[s]))
        e("s_nop 0")
        for s in range(4): e("v_mul_f32 v%d, v%d, v%d"%(m[s],m[s],m[s]+1))
        e("v_add_f32 v6, v%d, v%d"%(m[0],m[1])); e("v_add_f32 v7, v%d, v%d"%(m[2],m[3])); e("v_add_f32 v6, v6, v7")
        e("v_rcp_f32 v6, v6"); e("s_nop 0")
        for s in range(4): e("v_mul_f32 v%d, v%d, v6"%(m[s],m[s]))
    for i in range(8):
        e("s_waitcnt vmcnt(%d)"%(7-i))
        for c in range(4):
            if i==0: e("v_mul_f32 v%d, v8, v%d"%(56+c,24+c))
            else: e("v_fmac_f32 v%d, v%d, v%d"%(56+c,8+2*i,24+4*i+c))
    for ror in (4,8):
        e("s_nop 1")
        for c in range(4): e("v_add_f32_dpp v%d, v%d, v%d row_ror:%d row_mask:0xf bank_mask:0xf"%(56+c,56+c,56+c,ror))
    for sw in ("v_permlane16_swap_b32","v_permlane32_swap_b32"):
        for c in range(4): e("v_mov_b32 v%d, v%d"%(60+c,56+c))
        e("s_nop 1")
        for c in range(4): e("%s v%d, v%d"%(sw,56+c,60+c))
        e("s_nop 1")
        for c in range(4): e("v_add_f32 v%d, v%d, v%d"%(56+c,56+c,60+c))
    e("v_cvt_pk_bf16_f32 v56, v56, v57"); e("v_cvt_pk_bf16_f32 v57, v58, v59")
    e("s_mov_b64 exec, 15")
    e("buffer_store_dwordx2 v[56:57], v5, s[8:11], s19 offen")
    lab("L_fend")
    e("s_endpgm")
    k2="\n".join(L)
    def desc(n,v):
        return (".amdhsa_kernel %s\n  .amdhsa_next_free_vgpr %d\n  .amdhsa_next_free_sgpr 80\n  .amdhsa_accum_offset %d\n"
        "  .amdhsa_group_segment_fixed_size 0\n  .amdhsa_kernarg_size 104\n  .amdhsa_user_sgpr_count 2\n"
        "  .amdhsa_user_sgpr_kernarg_segment_ptr 1\n  .amdhsa_system_sgpr_workgroup_id_x 1\n.end_amdhsa_kernel\n")%(n,v,v)
    out=HDR+"; @launch kernel=attn_kernel grid=(256,1,1) block=(512,1,1) lds=%d\n; @launch kernel=fin_kernel grid=(144,1,1) block=(64,1,1) lds=0\n"%LDS
    out+='.amdgcn_target "amdgcn-amd-amdhsa--gfx950"\n.text\n'
    for n,k in (("attn_kernel",k1),("fin_kernel",k2)):
        out+=".globl %s\n.p2align 8\n.type %s,@function\n%s\n"%(n,n,k)
    out+='.section .rodata,"a"\n.p2align 6\n'+desc("attn_kernel",256)+".p2align 6\n"+desc("fin_kernel",64)
    return out

if __name__=="__main__":
    opt={}
    for a in sys.argv[2:]:
        k,v=a.split("="); opt[k]=int(v) if v.lstrip("-").isdigit() else v
    open(sys.argv[1],"w").write(gen(opt))
```

```python
import sys
NAME="concat_heads__sliding_block_cached__sliding_block_cached__decode"
HDR=open("cdna_kernels/%s.s.ref"%NAME).read().split("; Override launch")[0]
YB,QPB,OBB,MLB=0,0x120000,0x160000,0x1A0000
WSSZ=0x1A2000
def gen(opt):
    NT=" nt"
    L=[]
    def e(s): L.append("    "+s)
    def lab(s): L.append(s+":")
    QB,OP,ML=0,1024,9216
    LDS=opt.get("lds",9472)
    vK,vV,vWq,vWo,vT=1,2,3,4,5
    M0=6; vO=10; A0=14; A1=18; Q=30; S=46; vM=78; vL=79
    SL=[80+4*i for i in range(44)]
    sK,sV,sWq,sWo,sX,sWs,sDb=36,40,44,48,52,56,84
    sW=60; sG=61; sKo=62; sVo=63; sQo=64; s4608=65; sC=66; sL2=67; sMem=68; sB=69; sYo=88; sIt=89
    TS=opt.get("ts",0)
    def stamp(i):
        if TS: e("s_memrealtime s[%d:%d]"%(70+2*i,71+2*i))
    lab("attn_kernel")
    stamp(0)
    e("s_cmp_ge_u32 s2, 256"); e("s_cbranch_scc1 L_end")
    e("s_load_dwordx16 s[8:23], s[0:1], 0")
    e("s_load_dwordx4 s[24:27], s[0:1], 64")
    e("s_load_dwordx4 s[28:31], s[0:1], 88")
    e("v_lshrrev_b32 v22, 6, v0"); e("v_and_b32 v23, 63, v0"); e("v_readfirstlane_b32 s%d, v22"%sW)
    e("s_and_b32 s3, s2, 7"); e("s_lshr_b32 s4, s2, 3")
    e("s_lshl_b32 s3, s3, 2"); e("s_and_b32 s5, s4, 3"); e("s_or_b32 s%d, s3, s5"%sG)
    e("s_lshr_b32 s%d, s4, 2"%sMem)
    e("s_lshr_b32 s5, s%d, 4"%sG)
    e("s_and_b32 s3, s%d, 15"%sG)
    e("s_lshr_b32 s%d, s%d, 2"%(sB,sMem))
    e("s_and_b32 s7, s%d, 3"%sMem)
    e("v_lshrrev_b32 v24, 4, v23")
    e("v_and_b32 v25, 15, v23")
    e("v_and_b32 v26, 3, v25"); e("v_lshlrev_b32 v26, 10, v26")
    e("v_lshrrev_b32 v27, 2, v25"); e("v_lshlrev_b32 v27, 8, v27")
    e("v_lshlrev_b32 v28, 4, v24"); e("v_add3_u32 v%d, v26, v27, v28"%vK)
    e("v_lshlrev_b32 v%d, 4, v23"%vV)
    e("s_lshl_b32 s32, s%d, 4"%sB); e("s_or_b32 s32, s32, s3"); e("s_lshl_b32 s32, s32, 22")
    e("s_lshl_b32 s33, s7, 18"); e("s_add_u32 s32, s32, s33"); e("s_add_u32 s32, s32, 0x300000")
    e("s_lshl_b32 s%d, s%d, 12"%(sKo,sW)); e("s_mov_b32 s%d, s%d"%(sVo,sKo))
    e("s_lshr_b32 s34, s%d, 1"%sMem); e("s_mul_i32 s35, s34, 288"); e("s_mul_i32 s34, s34, %d"%(144*8192))
    e("s_lshl_b32 s33, s3, 9"); e("s_add_u32 s34, s34, s33"); e("s_and_b32 s33, s%d, 1"%sMem); e("s_lshl_b32 s33, s33, 8"); e("s_add_u32 s34, s34, s33")
    e("s_lshl_b32 s33, s3, 3"); e("s_add_u32 s33, s33, s%d"%sMem)
    e("s_lshl_b32 s6, s5, 8"); e("s_add_u32 s%d, s6, s33"%sYo); e("s_mul_i32 s%d, s%d, 2304"%(sYo,sYo))
    e("s_mul_i32 s33, s33, %d"%(32*1152))
    e("s_cmp_eq_u32 s5, 0")
    e("s_waitcnt lgkmcnt(0)")
    for d,a,b in ((sK,10,20),(sV,12,22),(sX,8,18),(sWq,14,24),(sWo,16,26)):
        e("s_cselect_b64 s[%d:%d], s[%d:%d], s[%d:%d]"%(d,d+1,a,a+1,b,b+1))
    def fin(d,off,size):
        e("s_add_u32 s%d, s%d, s%d"%(d,d,off)); e("s_addc_u32 s%d, s%d, 0"%(d+1,d+1))
        e("s_mov_b32 s%d, %s"%(d+2,size)); e("s_mov_b32 s%d, 0x00020000"%(d+3))
    fin(sK,32,"0x40000"); fin(sV,32,"0x40000"); fin(sX,35,"%d"%(2304-864)); fin(sWq,34,"%d"%(143*8192+256)); fin(sWo,33,"%d"%(32*1152))
    e("s_mov_b32 s%d, s30"%sWs); e("s_mov_b32 s%d, s31"%(sWs+1)); e("s_mov_b32 s%d, 0x%x"%(sWs+2,0x400000 if TS else WSSZ)); e("s_mov_b32 s%d, 0x00020000"%(sWs+3))
    e("s_mov_b32 s%d, s28"%sDb); e("s_mov_b32 s%d, s29"%(sDb+1)); e("s_movk_i32 s%d, 256"%(sDb+2)); e("s_mov_b32 s%d, 0x00020000"%(sDb+3))
    Kl=[("k",t,m) for t in range(8) for m in range(4)]
    Vl=[("v",t,r) for t in range(8) for r in range(4)]
    Wl=[("wo",u,0) for u in range(8)]
    wpos=opt.get("wpos",12)
    loads=Kl+Vl[:wpos]+Wl+Vl[wpos:]
    st={"n":0,"next":0,"done":0}; pos={}; reg={}; cur={"k":0,"v":0}; free=list(SL)
    def ld(k,r):
        d="v[%d:%d]"%(r,r+3); reg[k]=r
        if k[0]=="k":
            while cur["k"]<k[1]: e("s_add_u32 s%d, s%d, 0x8000"%(sKo,sKo)); cur["k"]+=1
            e("buffer_load_dwordx4 %s, v%d, s[%d:%d], s%d offen offset:%d%s"%(d,vK,sK,sK+3,sKo,k[2]*64,NT))
        elif k[0]=="v":
            while cur["v"]<k[1]: e("s_add_u32 s%d, s%d, 0x8000"%(sVo,sVo)); cur["v"]+=1
            e("buffer_load_dwordx4 %s, v%d, s[%d:%d], s%d offen offset:%d%s"%(d,vV,sV,sV+3,sVo,k[2]*1024,NT))
        else:
            e("buffer_load_dwordx4 %s, v%d, s[%d:%d], %s offen offset:%d%s"%(d,vWo,sWo,sWo+3,"s%d"%s4608 if k[1]>=4 else "0",(k[1]&3)*1152,NT))
        pos[k]=st["n"]; st["n"]+=1
    def issue(maxo,upto=None,pace=False):
        while st["next"]<(len(loads) if upto is None else upto) and free:
            if st["n"]-st["done"]>=maxo:
                if not pace: break
                e("s_waitcnt vmcnt(%d)"%(maxo-1)); st["done"]=st["n"]-maxo+1
            k=loads[st["next"]]; st["next"]+=1
            ld(k,free.pop(0))
    def wait(keys,maxo):
        while any(k not in pos for k in keys): issue(maxo,st["next"]+1,True)
        p=max(pos[k] for k in keys)
        if p+1>st["done"]:
            e("s_waitcnt vmcnt(%d)"%(st["n"]-p-1)); st["done"]=p+1
    def mkA(a,src):
        for r in range(4): e("v_and_b32 v%d, v%d, v%d"%(a+r,src,M0+r))
    def mfma(d,a,b,c):
        e("v_mfma_f32_16x16x32_bf16 v[%d:%d], v[%d:%d], v[%d:%d], %s"%(d,d+3,a,a+3,b,b+3,"0" if c is None else "v[%d:%d]"%(c,c+3)))
    def consts():
        e("s_mov_b32 s%d, 0x3db504f3"%sC); e("s_mov_b32 s%d, 0x3fb8aa3b"%sL2); e("s_movk_i32 s%d, 4608"%s4608)
        e("v_lshrrev_b32 v26, 3, v23"); e("v_and_b32 v27, 7, v23")
        e("v_and_b32 v28, 1, v27"); e("v_lshlrev_b32 v28, 4, v28"); e("v_mov_b32 v29, 0xffff"); e("v_lshlrev_b32 v28, v28, v29")
        e("v_lshrrev_b32 v29, 1, v27")
        for r in range(4):
            e("v_cmp_eq_u32 vcc, %d, v29"%r); e("s_nop 1"); e("v_cndmask_b32 v%d, 0, v28, vcc"%(M0+r))
        e("v_and_b32 v26, 1, v26")
        e("v_lshrrev_b32 v28, 1, v24"); e("v_lshlrev_b32 v28, 9, v28"); e("v_lshl_add_u32 v28, v25, 5, v28")
        e("v_and_b32 v29, 1, v24"); e("v_lshl_add_u32 v28, v29, 4, v28")
        e("v_mul_u32_u24 v%d, 9216, v24"%vWo); e("v_subrev_u32 v29, 3, v22"); e("v_lshlrev_b32 v29, 4, v29"); e("v_add_u32 v29, v29, v25")
        e("v_lshl_add_u32 v%d, v29, 4, v%d"%(vWo,vWo))
        e("v_cmp_gt_u32 vcc, 72, v29"); e("v_mov_b32 v27, 0x7ff00000"); e("s_nop 0"); e("v_cndmask_b32 v%d, v27, v%d, vcc"%(vWo,vWo))
        e("v_lshrrev_b32 v%d, 1, v24"%vT); e("v_mul_u32_u24 v%d, %d, v%d"%(vT,128*2304,vT)); e("v_lshl_add_u32 v%d, v29, 5, v%d"%(vT,vT))
        e("v_and_b32 v29, 1, v24"); e("v_lshl_add_u32 v%d, v29, 4, v%d"%(vT,vT)); e("v_cndmask_b32 v27, v27, v%d, vcc"%vT)
    def poll(name,off):
        e("s_mov_b32 s%d, 0"%sIt)
        lab(name)
        e("buffer_load_dword v%d, v%d, s[%d:%d], 0 offen offset:%d sc1"%(A0+1,A0,sDb,sDb+3,off))
        e("s_add_u32 s%d, s%d, 1"%(sIt,sIt))
        e("s_waitcnt vmcnt(0)")
        e("v_readfirstlane_b32 s32, v%d"%(A0+1))
        e("s_cmp_ge_u32 s%d, 0x40000"%sIt); e("s_cbranch_scc1 %s_x"%name)
        e("s_cmp_lt_u32 s32, 8"); e("s_cbranch_scc1 %s"%name)
        lab(name+"_x")
    def signal(off):
        e("s_lshl_b32 s32, s%d, 2"%sG); e("v_mov_b32 v%d, s32"%A0); e("v_mov_b32 v%d, 1"%(A0+1))
        e("s_waitcnt vmcnt(0)")
        e("s_mov_b64 exec, 1")
        e("buffer_atomic_add v%d, v%d, s[%d:%d], 0 offen offset:%d sc1"%(A0+1,A0,sDb,sDb+3,off))
        e("s_mov_b64 exec, -1")
    NPRE=44
    e("s_cmp_lg_u32 s%d, 0"%sW); e("s_cbranch_scc1 L_strm")
    X=S
    e("v_lshrrev_b32 v26, 3, v25"); e("v_mul_u32_u24 v26, 1152, v26"); e("v_mul_u32_u24 v27, 72, v24"); e("v_add_u32 v%d, v26, v27"%vT)
    e("v_mul_u32_u24 v26, %d, v24"%(36*8192)); e("v_lshl_add_u32 v%d, v25, 4, v26"%vWq)
    for i in range(4): e("buffer_load_dwordx4 v[%d:%d], v%d, s[%d:%d], 0 offen offset:%d"%(X+4*i,X+4*i+3,vT,sX,sX+3,16*i))
    e("buffer_load_dwordx2 v[%d:%d], v%d, s[%d:%d], 0 offen offset:64"%(X+16,X+17,vT,sX,sX+3))
    e("s_mov_b32 s%d, 0"%sQo)
    for t in range(36):
        r=SL[8+t]
        e("buffer_load_dwordx4 v[%d:%d], v%d, s[%d:%d], s%d offen%s"%(r,r+3,vWq,sWq,sWq+3,sQo,NT))
        e("s_add_u32 s%d, s%d, 0x2000"%(sQo,sQo))
    if opt.get("bar0",1): e("s_barrier")
    issue(99,8)
    consts()
    e("s_mov_b32 s32, 0x01000100"); e("s_mov_b32 s33, 0x03020302")
    for t in range(36):
        a=A0 if t%2==0 else A1
        if t==0: e("s_waitcnt vmcnt(44)")
        e("v_perm_b32 v%d, v%d, v%d, s%d"%(vT,X+t//2,X+t//2,32+(t&1)))
        mkA(a,vT)
        e("s_waitcnt vmcnt(%d)"%(8+35-t)); e("s_nop 0")
        mfma(vO,a,SL[8+t],None if t==0 else vO)
    stamp(1)
    e("s_lshl_b32 s34, s%d, 3"%sG); e("s_add_u32 s35, s34, s%d"%sMem); e("s_lshl_b32 s35, s35, 10"); e("s_add_u32 s35, s35, 0x%x"%QPB)
    e("s_nop 4")
    e("buffer_store_dwordx4 v[%d:%d], v28, s[%d:%d], s35 offen sc1"%(vO,vO+3,sWs,sWs+3))
    signal(0)
    st["n"]+=1; st["done"]=st["n"]-1
    issue(opt.get("mo0",10),NPRE,True)
    poll("L_p1",0)
    e("v_lshrrev_b32 v%d, 5, v23"%vT); e("v_lshlrev_b32 v%d, 9, v%d"%(vT,vT)); e("v_add_u32 v%d, v%d, v%d"%(vT,vT,vV))
    e("s_lshl_b32 s34, s34, 10"); e("s_lshl_b32 s35, s%d, 9"%sB); e("s_add_u32 s34, s34, s35"); e("s_add_u32 s34, s34, 0x%x"%QPB); e("s_add_u32 s35, s34, 4096")
    for rq in range(4): e("buffer_load_dwordx4 v[%d:%d], v%d, s[%d:%d], s%d offen offset:%d sc1"%(S+4*rq,S+4*rq+3,vT,sWs,sWs+3,34+rq//2,(rq&1)*2048))
    e("v_lshlrev_b32 v%d, 3, v23"%vT)
    e("s_waitcnt vmcnt(0)")
    for i in range(4): e("v_add_f32 v%d, v%d, v%d"%(S+i,S+i,S+4+i)); e("v_add_f32 v%d, v%d, v%d"%(S+8+i,S+8+i,S+12+i))
    for i in range(4): e("v_add_f32 v%d, v%d, v%d"%(S+i,S+i,S+8+i))
    e("v_cvt_pk_bf16_f32 v%d, v%d, v%d"%(S,S,S+1)); e("v_cvt_pk_bf16_f32 v%d, v%d, v%d"%(S+1,S+2,S+3))
    e("ds_write_b64 v%d, v[%d:%d] offset:%d"%(vT,S,S+1,QB))
    e("s_waitcnt lgkmcnt(0)")
    e("s_branch L_join")
    lab("L_strm")
    st.update(n=0,next=0,done=0); pos.clear(); cur.update(k=0,v=0); free[:]=list(SL)
    if opt.get("bar0",1): e("s_barrier")
    mo1=opt.get("mo1",4)
    issue(mo1,mo1); consts(); issue(mo1,NPRE,True)
    stamp(1)
    lab("L_join")
    e("s_barrier")
    stamp(2)
    e("v_lshlrev_b32 v%d, 8, v26"%vT); e("v_lshl_add_u32 v%d, v24, 4, v%d"%(vT,vT))
    for m in range(4): e("ds_read_b128 v[%d:%d], v%d offset:%d"%(Q+4*m,Q+4*m+3,vT,QB+64*m))
    e("s_waitcnt lgkmcnt(0)")
    mo2=opt.get("mo2",12); mo3=opt.get("mo3",8)
    for t in range(8):
        wait([("k",t,m) for m in range(4)],mo2)
        for m in range(4): mfma(S+4*t,reg[("k",t,m)],Q+4*m,None if m==0 else S+4*t)
        for m in range(4): free.append(reg[("k",t,m)])
        issue(mo2)
    e("s_nop 7")
    for i in range(0,32,2):
        a,b=S+i,S+i+1
        e("v_cvt_pk_bf16_f32 v%d, v%d, v%d"%(b,a,b))
        e("v_lshlrev_b32 v%d, 16, v%d"%(a,b)); e("v_and_b32 v%d, 0xffff0000, v%d"%(b,b))
        e("v_mul_f32 v%d, s%d, v%d"%(a,sC,a)); e("v_mul_f32 v%d, s%d, v%d"%(b,sC,b))
        e("v_cvt_pk_bf16_f32 v%d, v%d, v%d"%(b,a,b))
        e("v_lshlrev_b32 v%d, 16, v%d"%(a,b)); e("v_and_b32 v%d, 0xffff0000, v%d"%(b,b))
    e("v_max_f32 v%d, v%d, v%d"%(vM,S,S+1))
    for i in range(2,32,2): e("v_max3_f32 v%d, v%d, v%d, v%d"%(vM,vM,S+i,S+i+1))
    def xred(v,op):
        for sw in ("v_permlane32_swap_b32","v_permlane16_swap_b32"):
            e("v_mov_b32 v%d, v%d"%(vT,v)); e("s_nop 1"); e("%s v%d, v%d"%(sw,v,vT)); e("s_nop 1"); e("%s v%d, v%d, v%d"%(op,v,v,vT))
    xred(vM,"v_max_f32")
    e("v_mul_f32 v%d, s%d, v%d"%(vM,sL2,vM))
    for i in range(32): e("v_fma_f32 v%d, v%d, s%d, -v%d"%(S+i,S+i,sL2,vM))
    for i in range(32): e("v_exp_f32 v%d, v%d"%(S+i,S+i))
    e("v_add_f32 v%d, v%d, v%d"%(vL,S,S+1))
    for i in range(2,32): e("v_add_f32 v%d, v%d, v%d"%(vL,vL,S+i))
    for i in range(32): e("v_cvt_pk_bf16_f32 v%d, v%d, v%d"%(S+i,S+i,S+i))
    xred(vL,"v_add_f32")
    e("v_lshlrev_b32 v%d, 5, v26"%vT); e("v_lshl_add_u32 v%d, v22, 2, v%d"%(vT,vT))
    e("ds_write_b32 v%d, v%d offset:%d"%(vT,vM,ML)); e("ds_write_b32 v%d, v%d offset:%d"%(vT,vL,ML+64))
    stamp(3)
    for t in range(8):
        for r in range(4):
            a=A0 if r%2==0 else A1
            mkA(a,S+4*t+r)
            wait([("v",t,r)],mo3); e("s_nop 1")
            mfma(vO,a,reg[("v",t,r)],None if (t==0 and r==0) else vO)
            free.append(reg[("v",t,r)])
            issue(mo3)
    assert st["next"]==len(loads)
    e("v_lshl_add_u32 v%d, v22, 10, v28"%vT)
    e("v_lshlrev_b32 v%d, 12, v26"%A1); e("v_lshl_add_u32 v%d, v24, 5, v%d"%(A1,A1)); e("v_lshlrev_b32 v%d, 5, v26"%(A1+1))
    e("s_lshl_b32 s34, s%d, 13"%sG); e("s_lshl_b32 s35, s%d, 7"%sMem); e("s_add_u32 s34, s34, s35"); e("s_add_u32 s34, s34, 0x%x"%OBB)
    e("s_lshl_b32 s35, s%d, 1"%sG); e("s_add_u32 s35, s35, s%d"%sB); e("s_lshl_b32 s35, s35, 6"); e("s_add_u32 s35, s35, 0x%x"%MLB)
    e("ds_write_b128 v%d, v[%d:%d] offset:%d"%(vT,vO,vO+3,OP))
    e("s_waitcnt lgkmcnt(0)"); e("s_barrier")
    stamp(4)
    e("s_cmp_lg_u32 s%d, 0"%sW); e("s_cbranch_scc1 L_w2")
    Mr=Q; Lr=Q+8
    e("v_lshrrev_b32 v%d, 5, v23"%vT); e("v_lshlrev_b32 v%d, 5, v%d"%(A0,vT))
    e("ds_read_b128 v[%d:%d], v%d offset:%d"%(Mr,Mr+3,A0,ML)); e("ds_read_b128 v[%d:%d], v%d offset:%d"%(Mr+4,Mr+7,A0,ML+16))
    e("ds_read_b128 v[%d:%d], v%d offset:%d"%(Lr,Lr+3,A0,ML+64)); e("ds_read_b128 v[%d:%d], v%d offset:%d"%(Lr+4,Lr+7,A0,ML+80))
    for w in range(8): e("ds_read_b128 v[%d:%d], v%d offset:%d"%(S+4*w,S+4*w+3,vV,OP+1024*w))
    e("s_lshl_b32 s6, s%d, 3"%sG); e("s_add_u32 s6, s6, s%d"%sMem); e("s_lshl_b32 s6, s6, 10"); e("s_add_u32 s6, s6, 0x%x"%OBB)
    e("s_lshl_b32 s7, s%d, 7"%sG); e("s_lshl_b32 s3, s%d, 3"%sMem); e("s_add_u32 s7, s7, s3"); e("s_add_u32 s7, s7, 0x%x"%MLB)
    e("v_lshlrev_b32 v%d, 6, v%d"%(vT,vT))
    e("s_waitcnt lgkmcnt(10)")
    e("v_max3_f32 v%d, v%d, v%d, v%d"%(vM,Mr,Mr+1,Mr+2)); e("v_max3_f32 v%d, v%d, v%d, v%d"%(vM,vM,Mr+3,Mr+4))
    e("v_max3_f32 v%d, v%d, v%d, v%d"%(vM,vM,Mr+5,Mr+6)); e("v_max_f32 v%d, v%d, v%d"%(vM,vM,Mr+7))
    for w in range(8): e("v_sub_f32 v%d, v%d, v%d"%(Mr+w,Mr+w,vM))
    for w in range(8): e("v_exp_f32 v%d, v%d"%(Mr+w,Mr+w))
    e("s_waitcnt lgkmcnt(0)")
    for u in range(4): e("v_mul_f32 v%d, v%d, v%d"%(S+u,S+u,Mr))
    for w in range(1,8):
        for u in range(4): e("v_fmac_f32 v%d, v%d, v%d"%(S+u,S+4*w+u,Mr+w))
    e("buffer_store_dwordx4 v[%d:%d], v%d, s[%d:%d], s6 offen sc1"%(S,S+3,vV,sWs,sWs+3))
    e("v_mul_f32 v%d, v%d, v%d"%(vL,Mr,Lr))
    for w in range(1,8): e("v_fmac_f32 v%d, v%d, v%d"%(vL,Mr+w,Lr+w))
    e("s_mov_b32 exec_lo, 1"); e("s_mov_b32 exec_hi, 1")
    e("buffer_store_dwordx2 v[%d:%d], v%d, s[%d:%d], s7 offen sc1"%(vM,vL,vT,sWs,sWs+3))
    e("s_mov_b64 exec, -1")
    signal(128)
    poll("L_p2",128)
    lab("L_w2")
    e("s_barrier")
    if not TS: e("s_cmp_lt_u32 s%d, 3"%sW); e("s_cbranch_scc1 L_end")
    for i in range(2): e("buffer_load_dwordx4 v[%d:%d], v%d, s[%d:%d], s35 offen offset:%d sc1"%(Q+4*i,Q+4*i+3,A1+1,sWs,sWs+3,16*i))
    for s in range(4):
        for i in range(2): e("buffer_load_dwordx4 v[%d:%d], v%d, s[%d:%d], s34 offen offset:%d sc1"%(S+8*s+4*i,S+8*s+4*i+3,A1,sWs,sWs+3,1024*s+16*i))
    e("s_waitcnt vmcnt(8)")
    m=[Q+2*s for s in range(4)]
    e("v_max3_f32 v%d, v%d, v%d, v%d"%(vM,m[0],m[1],m[2])); e("v_max_f32 v%d, v%d, v%d"%(vM,vM,m[3]))
    for s in range(4): e("v_sub_f32 v%d, v%d, v%d"%(m[s],m[s],vM))
    for s in range(4): e("v_exp_f32 v%d, v%d"%(m[s],m[s]))
    e("s_nop 0")
    e("v_mul_f32 v%d, v%d, v%d"%(vL,m[0],m[0]+1))
    for s in range(1,4): e("v_fmac_f32 v%d, v%d, v%d"%(vL,m[s],m[s]+1))
    e("v_rcp_f32 v%d, v%d"%(vL,vL)); e("s_nop 0")
    for s in range(4): e("v_mul_f32 v%d, v%d, v%d"%(m[s],m[s],vL))
    e("s_waitcnt vmcnt(0)")
    for u in range(8): e("v_mul_f32 v%d, v%d, v%d"%(S+u,S+u,m[0]))
    for s in range(1,4):
        for u in range(8): e("v_fmac_f32 v%d, v%d, v%d"%(S+u,S+8*s+u,m[s]))
    for u in range(8): e("v_cvt_pk_bf16_f32 v%d, v%d, v%d"%(S+u,S+u,S+u))
    for u in range(8):
        a=A0 if u%2==0 else A1
        mkA(a,S+u); e("s_nop 1")
        mfma(vO,a,reg[("wo",u,0)],None if u==0 else vO)
    e("s_nop 7")
    e("buffer_store_dwordx4 v[%d:%d], v27, s[%d:%d], s%d offen"%(vO,vO+3,sWs,sWs+3,sYo))
    stamp(5)
    if TS:
        e("s_waitcnt lgkmcnt(0)")
        for i in range(6): e("v_mov_b32 v%d, s%d"%(S+8+i,70+2*i))
        e("s_getreg_b32 s34, hwreg(HW_REG_XCC_ID)"); e("v_mov_b32 v%d, s34"%(S+14)); e("v_mov_b32 v%d, s2"%(S+15))
        e("s_lshl_b32 s34, s2, 3"); e("s_add_u32 s34, s34, s%d"%sW); e("s_lshl_b32 s34, s34, 5"); e("s_add_u32 s34, s34, 0x200000")
        e("v_mov_b32 v%d, 0"%vT); e("s_mov_b64 exec, 1")
        e("buffer_store_dwordx4 v[%d:%d], v%d, s[%d:%d], s34 offen"%(S+8,S+11,vT,sWs,sWs+3))
        e("buffer_store_dwordx4 v[%d:%d], v%d, s[%d:%d], s34 offen offset:16"%(S+12,S+15,vT,sWs,sWs+3))
    lab("L_end")
    e("s_endpgm")
    k1="\n".join(L); L.clear()
    lab("fin_kernel")
    if TS: e("s_memrealtime s[24:25]")
    e("s_cmp_ge_u32 s2, 144"); e("s_cbranch_scc1 L_fend")
    e("s_load_dwordx2 s[4:5], s[0:1], 96"); e("s_load_dwordx2 s[8:9], s[0:1], 80")
    e("s_mul_i32 s12, s2, 1821"); e("s_lshr_b32 s12, s12, 16")
    e("s_mul_i32 s13, s12, 36"); e("s_sub_u32 s13, s2, s13")
    e("v_lshrrev_b32 v1, 2, v0"); e("v_and_b32 v2, 3, v0")
    e("s_lshl_b32 s14, s12, 4"); e("v_add_u32 v1, s14, v1")
    e("v_mul_u32_u24 v4, 18432, v1"); e("v_lshl_add_u32 v4, v2, 4, v4")
    e("s_lshl_b32 s14, s13, 6"); e("v_add_u32 v4, s14, v4")
    e("s_mov_b32 s6, 0x120000"); e("s_mov_b32 s7, 0x00020000"); e("s_movk_i32 s10, 4608"); e("s_mov_b32 s11, 0x00020000")
    e("s_movk_i32 s16, 4608"); e("s_movk_i32 s17, 9216"); e("s_movk_i32 s18, 13824")
    e("s_waitcnt lgkmcnt(0)")
    for i in range(8): e("buffer_load_dwordx4 v[%d:%d], v4, s[4:7], %s offen offset:%d"%(24+4*i,27+4*i,["0","s16","s17","s18"][i//2],(i&1)*2304))
    e("s_and_b32 s19, s12, 1"); e("s_mul_i32 s19, s19, 2304"); e("s_lshr_b32 s20, s12, 1"); e("s_mul_i32 s20, s20, 1152")
    e("s_add_u32 s19, s19, s20"); e("s_lshl_b32 s20, s13, 5"); e("s_add_u32 s19, s19, s20")
    e("v_lshlrev_b32 v5, 3, v2")
    e("s_waitcnt vmcnt(0)")
    for st_ in (16,8,4):
        for i in range(st_): e("v_add_f32 v%d, v%d, v%d"%(24+i,24+i,24+i+st_))
    for ror in (4,8):
        e("s_nop 1")
        for c in range(4): e("v_add_f32_dpp v%d, v%d, v%d row_ror:%d row_mask:0xf bank_mask:0xf"%(24+c,24+c,24+c,ror))
    for sw in ("v_permlane16_swap_b32","v_permlane32_swap_b32"):
        for c in range(4): e("v_mov_b32 v%d, v%d"%(60+c,24+c))
        e("s_nop 1")
        for c in range(4): e("%s v%d, v%d"%(sw,24+c,60+c))
        e("s_nop 1")
        for c in range(4): e("v_add_f32 v%d, v%d, v%d"%(24+c,24+c,60+c))
    e("v_cvt_pk_bf16_f32 v56, v24, v25"); e("v_cvt_pk_bf16_f32 v57, v26, v27")
    e("s_mov_b64 exec, 15")
    e("buffer_store_dwordx2 v[56:57], v5, s[8:11], s19 offen")
    if TS:
        e("s_waitcnt vmcnt(0)"); e("s_memrealtime s[22:23]"); e("s_waitcnt lgkmcnt(0)")
        e("v_mov_b32 v6, s24"); e("v_mov_b32 v7, s22"); e("s_lshl_b32 s21, s2, 3"); e("s_add_u32 s21, s21, 0x300000")
        e("s_mov_b32 s6, 0x400000"); e("v_mov_b32 v5, 0"); e("s_mov_b64 exec, 1")
        e("buffer_store_dwordx2 v[6:7], v5, s[4:7], s21 offen")
    lab("L_fend")
    e("s_endpgm")
    k2="\n".join(L)
    def desc(n,v):
        return (".amdhsa_kernel %s\n  .amdhsa_next_free_vgpr %d\n  .amdhsa_next_free_sgpr 96\n  .amdhsa_accum_offset %d\n"
        "  .amdhsa_group_segment_fixed_size 0\n  .amdhsa_kernarg_size 104\n  .amdhsa_user_sgpr_count 2\n"
        "  .amdhsa_user_sgpr_kernarg_segment_ptr 1\n  .amdhsa_system_sgpr_workgroup_id_x 1\n.end_amdhsa_kernel\n")%(n,v,v)
    out=HDR+"; @launch kernel=attn_kernel grid=(256,1,1) block=(512,1,1) lds=%d\n; @launch kernel=fin_kernel grid=(144,1,1) block=(64,1,1) lds=0\n"%LDS
    out+='.amdgcn_target "amdgcn-amd-amdhsa--gfx950"\n.text\n'
    for n,k in (("attn_kernel",k1),("fin_kernel",k2)):
        out+=".globl %s\n.p2align 8\n.type %s,@function\n%s\n"%(n,n,k)
    out+='.section .rodata,"a"\n.p2align 6\n'+desc("attn_kernel",256)+".p2align 6\n"+desc("fin_kernel",64)
    return out
if __name__=="__main__":
    opt={}
    for a in sys.argv[2:]:
        k,v=a.split("="); opt[k]=int(v) if v.lstrip("-").isdigit() else v
    open(sys.argv[1],"w").write(gen(opt))
```
